```python
import torch

def _softmax(x, axis=-1):
    return torch.softmax(x, dim=axis)
def _gelu(x):
    return torch.nn.functional.gelu(x, approximate="tanh")
def _silu(x):
    return torch.nn.functional.silu(x)
def _sigmoid(x):
    return torch.sigmoid(x)
def _layernorm(x, axis=-1, eps=1e-5):
    m = x.mean(dim=axis, keepdim=True)
    v = x.var(dim=axis, keepdim=True, unbiased=False)
    return (x - m) / torch.sqrt(v + eps)
def _scatter_add(tgt, idx, src, axis=0):
    return tgt.clone().index_add_(axis, idx, src)
def _segment_sum(src, seg, n):
    out = torch.zeros((n,) + src.shape[1:], dtype=src.dtype)
    return out.index_add_(0, seg, src)
def _pad(x, pw):
    flat = tuple(v for pair in reversed(pw) for v in pair)
    return torch.nn.functional.pad(x, flat)

kernel_name = 'standalone__fused_bias_dropout_add__prompt'

def setup_inputs():

    _w = (lambda a: (lambda t: t.to(torch.bfloat16) if t.is_floating_point() else t)(torch.as_tensor(a)))
    B, S, D = 2, 2048, 1024
    keep = 0.9
    mask = (torch.rand(B, S, D) < keep).to(float)
    return {
        "x": _w((lambda *s: torch.randn(*s, dtype=torch.bfloat16) * 0.05)(B, S, D)),
        "bias": _w((lambda *s: torch.randn(*s, dtype=torch.bfloat16) * 0.05)(D)),
        "mask": _w(mask),
        "residual": _w((lambda *s: torch.randn(*s, dtype=torch.bfloat16) * 0.05)(B, S, D)),
    }

def reference(x, bias, mask, residual):
    keep = 0.9
    return residual + (x + bias) * mask * (1.0 / keep)
```

```python
import re, sys
sys.path.insert(0, "gen")
K1 = "standalone__fused_bias_dropout_add__prompt_kernel"

def stamp(src):
    m = re.search(r"; @launch grid=\((\d+),1,1\) block=\((\d+),1,1\) lds=0\n", src)
    nwg, block = int(m.group(1)), int(m.group(2))
    nwaves = nwg * block // 64
    lines = src.split("\n")
    out = []
    state = 0
    nvm = 0
    for ln in lines:
        s = ln.strip()
        if s == K1 + ":":
            out.append(ln); out.append("    s_memrealtime s[44:45]"); out.append("    s_load_dwordx2 s[52:53], s[0:1], 48"); continue
        if s == "s_waitcnt lgkmcnt(0)" and state == 0:
            out.append(ln); out.append("    s_memrealtime s[46:47]"); state = 1; continue
        if s.startswith("s_waitcnt vmcnt") and state == 1:
            nvm += 1
            out.append(ln)
            if nvm == 2:
                out.append("    s_memrealtime s[48:49]"); state = 2
            continue
        if s == "L_done:":
            out += ["    s_waitcnt vmcnt(0)", "    s_memrealtime s[50:51]",
                    f"    s_mov_b32 s54, {nwaves*16}", "    s_mov_b32 s55, 0x20000",
                    f"    s_mul_i32 s56, s2, {block//64*16}",
                    "    v_and_b32 v4, 63, v0", "    v_lshrrev_b32 v5, 6, v0", "    v_lshlrev_b32 v5, 4, v5",
                    "    v_cmp_eq_u32 vcc, 0, v4", "    s_waitcnt lgkmcnt(0)",
                    "    v_mov_b32 v8, s44", "    v_mov_b32 v9, s46", "    v_mov_b32 v10, s48", "    v_mov_b32 v11, s50",
                    "    s_and_saveexec_b64 s[58:59], vcc",
                    "    buffer_store_dwordx4 v[8:11], v5, s[52:55], s56 offen",
                    ]
        out.append(ln)
    src = "\n".join(out).replace(".amdhsa_next_free_sgpr 42", ".amdhsa_next_free_sgpr 64")
    return src, nwg, block, nwaves

METRICS = {
    "zero": "s_mov_b32 s30, 0",
    "span": "s_sub_u32 s30, s20, s27",
    "ramp": "s_sub_u32 s30, s20, s21",
    "karg1": "s_sub_u32 s30, s20, s22",
    "kargmax": "s_mov_b32 s30, s28",
    "data1": "s_sub_u32 s30, s20, s24",
    "datalast": "s_sub_u32 s30, s20, s25",
    "end1": "s_sub_u32 s30, s20, s26",
    "gap": "s_mov_b32 s30, s27",
    "wavemax": "s_mov_b32 s30, s29",
    "total": "s_mov_b32 s30, s20",
}

def k2(nwaves, metric, K):
    n_iter = nwaves // 64
    return f"""
.text
.globl diag_kernel
.p2align 8
.type diag_kernel,@function
diag_kernel:
    s_memrealtime s[10:11]
    s_load_dwordx2 s[4:5], s[0:1], 48
    s_cmp_ge_u32 s2, 1
    s_cbranch_scc1 L_d_done
    s_mov_b32 s6, {nwaves*16}
    s_mov_b32 s7, 0x20000
    v_lshlrev_b32 v1, 4, v0
    v_mov_b32 v10, 0
    v_mov_b32 v11, -1
    v_mov_b32 v12, 0
    v_mov_b32 v13, -1
    v_mov_b32 v14, 0
    v_mov_b32 v15, -1
    v_mov_b32 v16, 0
    v_mov_b32 v17, -1
    v_mov_b32 v18, 0
    v_mov_b32 v19, 0
    s_mov_b32 s8, 0
    s_waitcnt lgkmcnt(0)
L_d_loop:
    buffer_load_dwordx4 v[2:5], v1, s[4:7], s8 offen
    s_waitcnt vmcnt(0)
    v_sub_u32 v6, v3, v2
    v_sub_u32 v7, v5, v2
    v_max_u32 v18, v18, v6
    v_max_u32 v19, v19, v7
    v_sub_u32 v2, s10, v2
    v_sub_u32 v3, s10, v3
    v_sub_u32 v4, s10, v4
    v_sub_u32 v5, s10, v5
    v_max_u32 v10, v10, v2
    v_min_u32 v11, v11, v2
    v_max_u32 v12, v12, v3
    v_min_u32 v13, v13, v3
    v_max_u32 v14, v14, v4
    v_min_u32 v15, v15, v4
    v_max_u32 v16, v16, v5
    v_min_u32 v17, v17, v5
    s_add_u32 s8, s8, 1024
    s_cmp_lt_u32 s8, {nwaves*16}
    s_cbranch_scc1 L_d_loop
    s_mov_b32 s20, 0
    s_mov_b32 s21, -1
    s_mov_b32 s22, 0
    s_mov_b32 s23, -1
    s_mov_b32 s24, 0
    s_mov_b32 s25, -1
    s_mov_b32 s26, 0
    s_mov_b32 s27, -1
    s_mov_b32 s28, 0
    s_mov_b32 s29, 0
    s_mov_b32 s9, 0
    s_nop 4
L_d_red:
    v_readlane_b32 s31, v10, s9
    s_nop 3
    s_max_u32 s20, s20, s31
    v_readlane_b32 s31, v11, s9
    s_nop 3
    s_min_u32 s21, s21, s31
    v_readlane_b32 s31, v12, s9
    s_nop 3
    s_max_u32 s22, s22, s31
    v_readlane_b32 s31, v13, s9
    s_nop 3
    s_min_u32 s23, s23, s31
    v_readlane_b32 s31, v14, s9
    s_nop 3
    s_max_u32 s24, s24, s31
    v_readlane_b32 s31, v15, s9
    s_nop 3
    s_min_u32 s25, s25, s31
    v_readlane_b32 s31, v16, s9
    s_nop 3
    s_max_u32 s26, s26, s31
    v_readlane_b32 s31, v17, s9
    s_nop 3
    s_min_u32 s27, s27, s31
    v_readlane_b32 s31, v18, s9
    s_nop 3
    s_max_u32 s28, s28, s31
    v_readlane_b32 s31, v19, s9
    s_nop 3
    s_max_u32 s29, s29, s31
    s_add_u32 s9, s9, 1
    s_cmp_lt_u32 s9, 64
    s_cbranch_scc1 L_d_red
    {METRICS[metric]}
    s_min_u32 s30, s30, 5000
    s_mul_i32 s30, s30, {K}
    s_add_u32 s30, s30, 6000
L_d_spin:
    s_memrealtime s[12:13]
    s_waitcnt lgkmcnt(0)
    s_sub_u32 s14, s12, s10
    s_cmp_lt_u32 s14, s30
    s_cbranch_scc1 L_d_spin
L_d_done:
    s_endpgm
.section .rodata,"a"
.p2align 6
.amdhsa_kernel diag_kernel
  .amdhsa_next_free_vgpr 24
  .amdhsa_next_free_sgpr 40
  .amdhsa_accum_offset 24
  .amdhsa_group_segment_fixed_size 0
  .amdhsa_kernarg_size 56
  .amdhsa_user_sgpr_count 2
  .amdhsa_user_sgpr_kernarg_segment_ptr 1
  .amdhsa_system_sgpr_workgroup_id_x 1
.end_amdhsa_kernel
"""

def make(src, metric, K=10, pre=0):
    s, nwg, block, nwaves = stamp(src)
    line = f"; @launch grid=({nwg},1,1) block=({block},1,1) lds=0\n"
    one = f"; @launch kernel={K1} grid=({nwg},1,1) block=({block},1,1) lds=0\n"
    two = "; @launch kernel=diag_kernel grid=(1,1,1) block=(64,1,1) lds=0\n"
    return s.replace(line, one * (1 + pre) + two) + k2(nwaves, metric, K)

if __name__ == "__main__":
    src = open(sys.argv[1]).read()
    pref = sys.argv[2]
    pre = int(sys.argv[3])
    for mname in sys.argv[4:]:
        open(f"{pref}_{mname}.s", "w").write(make(src, mname, 10, pre))
```
